```python
import torch

def _softmax(x, axis=-1):
    return torch.softmax(x, dim=axis)

def _gelu(x):
    return torch.nn.functional.gelu(x, approximate='tanh')

def _silu(x):
    return torch.nn.functional.silu(x)

def _sigmoid(x):
    return torch.sigmoid(x)

def _layernorm(x, axis=-1, eps=1e-05):
    m = x.mean(dim=axis, keepdim=True)
    v = x.var(dim=axis, keepdim=True, unbiased=False)
    return (x - m) / torch.sqrt(v + eps)

def _scatter_add(tgt, idx, src, axis=0):
    return tgt.clone().index_add_(axis, idx, src)

def _segment_sum(src, seg, n):
    out = torch.zeros((n,) + src.shape[1:], dtype=src.dtype)
    return out.index_add_(0, seg, src)

def _pad(x, pw):
    flat = tuple((v for pair in reversed(pw) for v in pair))
    return torch.nn.functional.pad(x, flat)
kernel_name = 'adaLN_cond__gqa_block_cached__swiglu_ffn__decode'

def setup_inputs():

    _w = lambda a: (lambda t: t.to(torch.bfloat16) if t.is_floating_point() else t)(torch.as_tensor(a))

    def _A_setup():
        B, Sq, D = (1, 1, 640)
        Hq, Hkv, Sk, Dh = (32, 32, 8192, 128)
        assert Hq % Hkv == 0, (Hq, Hkv)
        return {'x': _w((lambda *s: torch.randn(*s, dtype=torch.bfloat16) * 0.05)(B, Sq, D)), 'k_cache': _w((lambda *s: torch.randn(*s, dtype=torch.bfloat16) * 3.2)(B, Hkv, Sk, Dh)), 'v_cache': _w((lambda *s: torch.randn(*s, dtype=torch.bfloat16) * 0.4)(B, Hkv, Sk, Dh)), 'wq': _w((lambda *s: torch.randn(*s, dtype=torch.bfloat16) * 3.2)(D, Hq * Dh) * D ** (-0.5)), 'wo': _w((lambda *s: torch.randn(*s, dtype=torch.bfloat16) * 0.4)(Hq * Dh, D) * (Hq * Dh) ** (-0.5))}
    _A_in = _A_setup()

    def _B_setup():
        B, S, D, F = (1, 1, 640, 1728)
        return {'x': _w((lambda *s: torch.randn(*s, dtype=torch.bfloat16) * 0.05)(B, S, D)), 'w_gate': _w((lambda *s: torch.randn(*s, dtype=torch.bfloat16) * 0.05)(D, F)), 'w_up': _w((lambda *s: torch.randn(*s, dtype=torch.bfloat16) * 0.05)(D, F)), 'w_down': _w((lambda *s: torch.randn(*s, dtype=torch.bfloat16) * 0.05)(F, D))}
    _B_in = _B_setup()
    return {'A_x': _A_in['x'], 'A_k_cache': _A_in['k_cache'], 'A_v_cache': _A_in['v_cache'], 'A_wq': _A_in['wq'], 'A_wo': _A_in['wo'], 'B_x': _B_in['x'], 'B_w_gate': _B_in['w_gate'], 'B_w_up': _B_in['w_up'], 'B_w_down': _B_in['w_down'], 'c': _w((lambda *s: torch.randn(*s, dtype=torch.bfloat16) * 0.1)(1, 640) * 8.0), 'w_mod': _w((lambda *s: torch.randn(*s, dtype=torch.bfloat16) * 0.1)(640, 6 * 640) * 640 ** (-0.5) * 8.0)}

def reference(A_x, A_k_cache, A_v_cache, A_wq, A_wo, B_x, B_w_gate, B_w_up, B_w_down, c, w_mod):

    def _A_ref(x, k_cache, v_cache, wq, wo):
        B, Sq, D = x.shape
        Hq, Dh = (32, 128)
        Hkv = k_cache.shape[1]
        rep = Hq // Hkv
        q = (lambda x, *d: x.permute(*d))((x @ wq).reshape(B, Sq, Hq, Dh), 0, 2, 1, 3)
        k = (lambda x, n, axis: torch.repeat_interleave(x, n, dim=axis))(k_cache, rep, axis=1)
        v = (lambda x, n, axis: torch.repeat_interleave(x, n, dim=axis))(v_cache, rep, axis=1)
        scores = torch.einsum('bhqd,bhkd->bhqk', q, k) * Dh ** (-0.5)
        p = _softmax(scores, axis=-1)
        o = torch.einsum('bhqk,bhkd->bhqd', p, v)
        return (lambda x, *d: x.permute(*d))(o, 0, 2, 1, 3).reshape(B, Sq, Hq * Dh) @ wo

    def _B_ref(x, w_gate, w_up, w_down):
        g = _silu(x @ w_gate)
        u = x @ w_up
        return g * u @ w_down
    x = A_x
    mod = (_silu(c) @ w_mod).reshape(c.shape[0], 6, 1, -1)
    sa, ca, ga, sb, cb, gb = (mod[:, 0].clone(), mod[:, 1].clone(), mod[:, 2].clone(), mod[:, 3].clone(), mod[:, 4].clone(), mod[:, 5].clone())
    h = _layernorm(x, axis=-1) * (1 + ca) + sa
    x = x + ga * _A_ref(h, A_k_cache, A_v_cache, A_wq, A_wo)
    h = _layernorm(x, axis=-1) * (1 + cb) + sb
    x = x + gb * _B_ref(h, B_w_gate, B_w_up, B_w_down)
    return x
```

```python
import re

TRANS = ("v_exp_f32", "v_log_f32", "v_rcp_f32", "v_rsq_f32", "v_sqrt_f32", "v_sin_f32", "v_cos_f32")

def _regs(tok):
    tok = tok.strip()
    tok = tok.lstrip("-")
    m = re.fullmatch(r"abs\((.*)\)", tok) or re.fullmatch(r"\|(.*)\|", tok)
    if m: tok = m.group(1)
    m = re.fullmatch(r"([vsa])(\d+)", tok)
    if m: return {(m.group(1), int(m.group(2)))}
    m = re.fullmatch(r"([vsa])\[(\d+):(\d+)\]", tok)
    if m: return {(m.group(1), i) for i in range(int(m.group(2)), int(m.group(3)) + 1)}
    if tok == "vcc": return {("s", 106), ("s", 107)}
    if tok == "vcc_lo": return {("s", 106)}
    if tok == "vcc_hi": return {("s", 107)}
    if tok == "exec": return {("e", 0)}
    return set()

class Ins:
    def __init__(self, text):
        self.text = text
        t = text.split(";")[0].strip()
        parts = t.split(None, 1)
        self.mn = parts[0]
        rest = parts[1] if len(parts) > 1 else ""
        ops, depth, cur = [], 0, ""
        for ch in rest:
            if ch in "[(": depth += 1
            if ch in "])": depth -= 1
            if ch == "," and depth == 0:
                ops.append(cur.strip()); cur = ""
            else:
                cur += ch
        if cur.strip(): ops.append(cur.strip())
        self.mods = ""
        if ops:
            lp = ops[-1].split(None, 1)
            ops[-1] = lp[0]
            if len(lp) > 1: self.mods = lp[1]
        self.ops = ops
        mn = self.mn
        self.is_mfma = mn.startswith("v_mfma")
        self.is_valu = mn.startswith("v_") and not self.is_mfma
        self.is_vmem = mn.startswith(("buffer_", "global_", "flat_"))
        self.is_ds = mn.startswith("ds_")
        self.is_salu = mn.startswith("s_")
        self.is_dpp = "_dpp" in mn or "quad_perm" in self.mods or "row_" in self.mods
        self.is_trans = any(mn.startswith(x) for x in TRANS)
        self.is_lane = mn.startswith(("v_readlane", "v_readfirstlane"))
        self.is_perm = mn.startswith("v_permlane")
        R = [_regs(o) for o in ops]
        dst, src = set(), set()
        if self.is_vmem:
            if "store" in mn or ("atomic" in mn and "sc0" not in self.mods):
                for r in R: src |= r
            elif mn.endswith("lds") or " lds" in (" " + self.mods):
                for r in R: src |= r
            else:
                dst |= R[0]
                for r in R[1:]: src |= r
            self.wide_store = "store" in mn and ("x3" in mn or "x4" in mn)
            if self.wide_store:
                self.store_data = R[0] if mn.startswith("buffer") else R[1]
        elif self.is_ds:
            if mn.startswith(("ds_read", "ds_bpermute", "ds_permute", "ds_swizzle")) or "_rtn" in mn:
                dst |= R[0]
                for r in R[1:]: src |= r
            else:
                for r in R: src |= r
        elif self.is_valu or self.is_mfma:
            dst |= R[0]
            k = 1
            if mn.startswith(("v_add_co", "v_addc_co", "v_sub_co", "v_subb_co", "v_subrev_co", "v_div_scale", "v_mad_u64")):
                dst |= R[1]; k = 2
            for r in R[k:]: src |= r
            if self.is_perm: dst |= R[1]; src |= R[0]
            if mn.startswith(("v_fmac", "v_dot2c", "v_writelane", "v_pk_fmac")) or self.is_dpp: src |= R[0]
            if mn.startswith("v_cndmask") and len(ops) == 3: src |= _regs("vcc")
            if mn.startswith("v_cmpx"): raise ValueError("v_cmpx not supported by DSL")
        elif self.is_salu:
            if mn.startswith(("s_cmp", "s_cbranch", "s_branch", "s_waitcnt", "s_nop", "s_barrier", "s_sleep", "s_setprio", "s_endpgm", "s_bitcmp")):
                for r in R: src |= r
            else:
                if R: dst |= R[0]
                for r in R[1:]: src |= r
        self.dst, self.src = dst, src
        self.R = R

    def states(self):
        if self.mn == "s_nop": return int(self.ops[0], 0) + 1
        return 1

def need(prev, cur):
    n = 0
    pv = {r for r in prev.dst if r[0] in "va"}
    ps = {r for r in prev.dst if r[0] == "s"}
    if prev.is_valu:
        if pv & cur.src:
            if cur.is_dpp: n = max(n, 2)
            if cur.is_mfma: n = max(n, 2)
            if cur.is_lane: n = max(n, 1)
            if cur.is_perm: n = max(n, 2)
            if prev.is_trans and cur.is_valu and not cur.is_trans: n = max(n, 1)
            if prev.is_trans and (cur.is_vmem or cur.is_ds): n = max(n, 1)
            if prev.mn.startswith("v_dot") and not (cur.mn == prev.mn and not (pv & (cur.R[1] | cur.R[2]))): n = max(n, 3)
        if ps & cur.src:
            if cur.is_valu or cur.is_mfma:
                n = max(n, 2)
                if cur.mn.startswith(("v_readlane", "v_writelane")) and (ps & cur.R[2]): n = max(n, 4)
            if cur.is_vmem: n = max(n, 5)
            if cur.is_salu: n = max(n, 1)
    if prev.is_mfma:
        passes = 4 if "16x16x32" in prev.mn else 8
        far = {4: 8, 8: 12}[passes]; ovl = {4: 6, 8: 10}[passes]; war = {4: 3, 8: 7}[passes]
        if cur.is_mfma:
            if pv & (cur.R[1] | cur.R[2]): n = max(n, far)
            c = cur.R[3]
            if pv & c and c != pv: n = max(n, ovl)
            if (pv & cur.dst) and c != pv: n = max(n, far)
        else:
            if pv & (cur.src | cur.dst): n = max(n, far)
            if cur.is_valu and (prev.R[3] & cur.dst): n = max(n, war)
    if prev.is_vmem and getattr(prev, "wide_store", False):
        if prev.store_data & cur.dst: n = max(n, 2)
    return n

class Asm:
    def __init__(self):
        self.lines = []
        self.hist = []
        self.nlabel = 0
    def raw(self, s):
        self.lines.append(s)
    def label(self, name):
        self.lines.append(name + ":")
    def newlabel(self, base="L"):
        self.nlabel += 1
        return f"{base}_{self.nlabel}"
    def comment(self, s):
        self.lines.append("  ; " + s)
    def flush(self, n=None):
        worst = 0
        for ins, dist in self.hist:
            lim = 0
            if ins.is_mfma: lim = 8 if "16x16x32" in ins.mn else 12
            elif ins.is_valu:
                lim = 5 if any(r[0] == "s" for r in ins.dst) else 2
                if ins.mn.startswith("v_dot"): lim = max(lim, 3)
            elif ins.is_vmem and getattr(ins, "wide_store", False): lim = 2
            worst = max(worst, lim - dist)
        if worst > 0: self._nop(worst)
    def _nop(self, k):
        while k > 0:
            c = min(k, 16)
            self._emit(Ins(f"s_nop {c-1}"))
            k -= c
    def _emit(self, ins):
        self.lines.append("  " + ins.text)
        st = ins.states()
        self.hist = [(i, d + st) for (i, d) in self.hist if d + st < 20]
        self.hist.append((ins, 0))
    def __call__(self, text):
        for t in text.strip().split("\n"):
            t = t.strip()
            if not t or t.startswith(";"): continue
            if t.endswith(":"):
                self.label(t[:-1]); continue
            ins = Ins(t)
            pad = 0
            for p, dist in self.hist:
                pad = max(pad, need(p, ins) - dist)
            if pad > 0: self._nop(pad)
            if ins.mn.startswith(("s_cbranch", "s_branch")):
                worst = 0
                for i2, dist in self.hist:
                    lim = 0
                    if i2.is_mfma: lim = 8 if "16x16x32" in i2.mn else 12
                    elif i2.is_valu:
                        lim = 5 if any(r[0] == "s" for r in i2.dst) else 2
                        if i2.mn.startswith("v_dot"): lim = max(lim, 3)
                    elif i2.is_vmem and getattr(i2, "wide_store", False): lim = 2
                    worst = max(worst, lim - dist - 1)
                if worst > 0: self._nop(worst)
            self._emit(ins)
    def text(self):
        return "\n".join(self.lines) + "\n"
```

```python
import sys
from asmdsl import Asm
KN = "adaLN_cond__gqa_block_cached__swiglu_ffn__decode"

R_M = 0x00000
R_Q = 0x10000
R_A = 0x30000
R_S = 0x50000
R_B = 0x54000
R_C = 0x59000
STAMP = 128 << 20
F_INV, F_Q, F_ML, F_OCNT = 0, 4, 8, 12
L_ML = 0x40
L_Q = 0x80
L_O = 0x200
L_RED = 0x1200
L_ST = 0x1A00
LDS_BYTES = 8192
P_X, P_K, P_V, P_WQ, P_WO, P_BX, P_WG, P_WU, P_WD, P_C, P_WM, P_OUT, P_DBG, P_WS = [36 + 2 * i for i in range(14)]
LOG2E = 0x3fb8aa3b
SCALE = 0x3db504f3
EPS = 0x3727c5ac
SPIN = 200000

class Gen:
    def __init__(self, cfg):
        self.c = dict(we=3, wo=4, mlslot=22, pvrate=4, qkrate=2, stamps=False, nt=True, hw=2, ilv=1, ntw=True)
        self.c.update(cfg)
        self.a = Asm()

    def sp(self, p): return f"s[{p}:{p+1}]"
    def srd(self, d, p, size):
        a = self.a
        a(f"s_mov_b32 s{d}, s{p}\ns_and_b32 s{d+1}, s{p+1}, 0xffff\ns_mov_b32 s{d+2}, {size}\ns_mov_b32 s{d+3}, 0x20000")
    def stamp(self, k):
        if self.c["stamps"]:
            self.a(f"s_memrealtime s[{70+2*(k%8)}:{71+2*(k%8)}]")
            self.pending.append(k)
    def stamp_flush(self):
        if not self.c["stamps"] or not self.pending: return
        a = self.a
        a("s_waitcnt lgkmcnt(0)")
        a(f"s_lshl_b32 s16, s2, 8\ns_add_u32 s16, s16, {STAMP}\ns_add_u32 s16, s{P_WS}, s16\ns_addc_u32 s17, s{P_WS+1}, 0")
        a("s_mov_b64 exec, 1\nv_mov_b32 v2, 0")
        for k in self.pending:
            off = k[1] if isinstance(k, tuple) else None
            kk = k[0] if isinstance(k, tuple) else k
            a(f"v_mov_b32 v4, s{70+2*(kk%8)}\nv_mov_b32 v5, s{71+2*(kk%8)}")
            if off:
                a(f"s_lshl_b32 s18, {off}, 3\nv_mov_b32 v3, s18")
                a(f"global_store_dwordx2 v3, v[4:5], s[16:17] offset:{8*kk}")
            else:
                a(f"global_store_dwordx2 v2, v[4:5], s[16:17] offset:{8*kk}")
            a("s_waitcnt vmcnt(0)")
        self.pending = []
    def lds_wait(self, off, val, vt, cmp="eq", sleep=1):
        a = self.a
        L = a.newlabel("Lw"); E = a.newlabel("Lwe")
        a(f"v_mov_b32 v{vt}, 0\ns_mov_b32 s34, 0")
        a(f"{L}:")
        a(f"ds_read_b32 v{vt+1}, v{vt} offset:{off}\ns_waitcnt lgkmcnt(0)\nv_readfirstlane_b32 s35, v{vt+1}")
        a(f"s_cmp_{'eq' if cmp=='eq' else 'ge'}_u32 s35, {val}\ns_cbranch_scc1 {E}")
        if sleep: a(f"s_sleep {sleep}")
        a(f"s_add_u32 s34, s34, 1\ns_cmp_lt_u32 s34, {SPIN*4}\ns_cbranch_scc1 {L}")
        a(f"{E}:")
    def lds_set(self, off, vt, val=1):
        a = self.a
        a(f"v_mov_b32 v{vt}, 0\nv_mov_b32 v{vt+1}, {val}\nds_write_b32 v{vt}, v{vt+1} offset:{off}")
    def poll(self, loads, regs, vt, sleep=0):
        a = self.a
        L = a.newlabel("Lp"); E = a.newlabel("Lpe")
        a("s_mov_b32 s34, 0")
        a(f"{L}:")
        for l in loads: a(l)
        a("s_waitcnt vmcnt(0)")
        rs = list(regs)
        if len(rs) == 1:
            t = rs[0]
        else:
            t = vt
            if len(rs) % 2 == 0:
                a(f"v_max_u32 v{vt}, v{rs[0]}, v{rs[1]}"); rs = rs[2:]
            else:
                a(f"v_max3_u32 v{vt}, v{rs[0]}, v{rs[1]}, v{rs[2]}"); rs = rs[3:]
            while rs:
                a(f"v_max3_u32 v{vt}, v{vt}, v{rs[0]}, v{rs[1]}"); rs = rs[2:]
        a(f"v_cmp_eq_u32 vcc, -1, v{t}")
        a(f"s_cmp_eq_u64 vcc, 0\ns_cbranch_scc1 {E}")
        if sleep: a(f"s_sleep {sleep}")
        a(f"s_add_u32 s34, s34, 1\ns_cmp_lt_u32 s34, {SPIN}\ns_cbranch_scc1 {L}")
        a(f"{E}:")
    def cnt_wait(self, off, val, vt):
        a = self.a
        L = a.newlabel("Lc"); E = a.newlabel("Lce")
        a(f"v_mov_b32 v{vt}, 0\ns_mov_b32 s34, 0")
        a(f"{L}:")
        a(f"global_load_dword v{vt+1}, v{vt}, {self.sp(P_DBG)} offset:{off} sc1\ns_waitcnt vmcnt(0)\nv_readfirstlane_b32 s35, v{vt+1}")
        a(f"s_cmp_ge_u32 s35, {val}\ns_cbranch_scc1 {E}")
        a(f"s_add_u32 s34, s34, 1\ns_cmp_lt_u32 s34, {SPIN}\ns_cbranch_scc1 {L}")
        a(f"{E}:")
    def reduce(self, op, v):
        a = self.a
        for ctl in ("quad_perm:[1,0,3,2] row_mask:0xf", "quad_perm:[2,3,0,1] row_mask:0xf", "row_half_mirror row_mask:0xf",
                    "row_mirror row_mask:0xf", "row_bcast:15 row_mask:0xa", "row_bcast:31 row_mask:0xc"):
            a(f"{op}_dpp v{v}, v{v}, v{v} {ctl} bank_mask:0xf")
    def rnd2(self, x, y, t):
        a = self.a
        a(f"v_cvt_pk_bf16_f32 v{t}, v{x}, v{y}\nv_lshlrev_b32 v{x}, 16, v{t}\nv_and_b32 v{y}, 0xffff0000, v{t}")
    def rnd1(self, x):
        a = self.a
        a(f"v_cvt_pk_bf16_f32 v{x}, v{x}, v{x}\nv_and_b32 v{x}, 0xffff0000, v{x}")
    def masks(self, fmt, base, t):
        a = self.a
        a(f"v_and_b32 v{t}, 1, v0\nv_lshlrev_b32 v{t}, 4, v{t}\nv_mov_b32 v{t+1}, 0xffff\nv_lshlrev_b32 v{t+1}, v{t}, v{t+1}")
        if fmt == 1:
            a(f"v_mov_b32 v{base}, v{t+1}"); return
        a(f"v_bfe_u32 v{t}, v0, 1, {2 if fmt == 4 else 1}")
        for i in range(fmt):
            a(f"v_cmp_eq_u32 vcc, {i}, v{t}\nv_cndmask_b32 v{base+i}, 0, v{t+1}, vcc")
    def silu(self, x, t):
        a = self.a
        a(f"v_mul_f32 v{t}, 0xbfb8aa3b, v{x}\nv_exp_f32 v{t}, v{t}\nv_add_f32 v{t}, 1.0, v{t}\nv_rcp_f32 v{t}, v{t}\nv_mul_f32 v{x}, v{x}, v{t}")
    def tile(self, acc, A, srcs, msk, c, B, first):
        a = self.a
        for i in range(4):
            a(f"v_and_b32_dpp v{A+i}, v{srcs[i]}, v{msk[i]} row_newbcast:{c} row_mask:0xf bank_mask:0xf")
        a(f"v_mfma_f32_16x16x32_bf16 v[{acc}:{acc+3}], v[{A}:{A+3}], v[{B}:{B+3}], {'0' if first else f'v[{acc}:{acc+3}]'}")
    def ws_base(self, d, off_sreg, const):
        a = self.a
        if off_sreg is None:
            a(f"s_add_u32 s{d}, s{P_WS}, {const}\ns_addc_u32 s{d+1}, s{P_WS+1}, 0")
        else:
            a(f"s_add_u32 s{d}, s{off_sreg}, {const}\ns_add_u32 s{d}, s{P_WS}, s{d}\ns_addc_u32 s{d+1}, s{P_WS+1}, 0")
    def exec40(self):
        self.a("s_mov_b32 exec_lo, 0x03ff03ff\ns_mov_b32 exec_hi, 0x03ff03ff")

    def build(self):
        a = self.a; c = self.c
        a.raw(open("cdna_kernels/" + KN + ".s.ref").read().split("; Override launch")[0].rstrip())
        a.raw(f"; @launch grid=(256,1,1) block=(768,1,1) lds={LDS_BYTES}")
        a.raw('.amdgcn_target "amdgcn-amd-amdhsa--gfx950"\n.text')
        a.raw(f".globl {KN}_kernel\n.p2align 8\n.type {KN}_kernel,@function\n{KN}_kernel:")
        self.pending = []
        a("s_cmp_ge_u32 s2, 256\ns_cbranch_scc1 L_end")
        a("s_load_dwordx16 s[36:51], s[0:1], 0\ns_load_dwordx8 s[52:59], s[0:1], 64\ns_load_dwordx4 s[60:63], s[0:1], 96")
        self.stamp(0)
        a("v_lshrrev_b32 v1, 6, v0\nv_and_b32 v0, 63, v0\nv_readfirstlane_b32 s3, v1")
        a("s_and_b32 s4, s2, 7\ns_lshl_b32 s4, s4, 5\ns_lshr_b32 s5, s2, 3\ns_add_u32 s4, s4, s5")
        a("s_lshr_b32 s5, s4, 3\ns_and_b32 s6, s4, 7\ns_lshr_b32 s7, s2, 1")
        a("s_mov_b32 s33, 0\ns_cmp_lt_u32 s7, 114\ns_cselect_b32 s33, 3, s33\ns_cmp_lt_u32 s7, 94\ns_cselect_b32 s33, 2, s33")
        a("s_cmp_lt_u32 s7, 40\ns_cselect_b32 s33, 1, s33\ns_bitcmp1_b32 s2, 0\ns_cselect_b32 s33, 0, s33")
        a("v_and_b32 v1, 15, v0\nv_lshrrev_b32 v2, 4, v0")
        a("s_waitcnt lgkmcnt(0)")
        a("s_cmp_ge_u32 s3, 4\ns_cbranch_scc1 L_stream")
        a("s_cmp_eq_u32 s3, 1\ns_cbranch_scc1 L_h1")
        a("s_cmp_eq_u32 s3, 2\ns_cbranch_scc1 L_h2")
        a("s_cmp_eq_u32 s3, 3\ns_cbranch_scc1 L_h3")
        p0 = list(self.pending)
        self.h0()
        self.pending = []; self.h1()
        self.pending = []; self.h3()
        self.pending = []; self.h2()
        self.tail()
        self.pending = []; self.stream()
        a("L_end:\ns_endpgm")
        a.raw('.section .rodata,"a"\n.p2align 6')
        a.raw(f".amdhsa_kernel {KN}_kernel\n  .amdhsa_next_free_vgpr 168\n  .amdhsa_next_free_sgpr 96\n  .amdhsa_accum_offset 168")
        a.raw("  .amdhsa_group_segment_fixed_size 0\n  .amdhsa_kernarg_size 112\n  .amdhsa_user_sgpr_count 2")
        a.raw("  .amdhsa_user_sgpr_kernarg_segment_ptr 1\n  .amdhsa_system_sgpr_workgroup_id_x 1\n  .amdhsa_float_denorm_mode_32 3\n.end_amdhsa_kernel")
        return a.text()

    def h0(self):
        a = self.a; c = self.c
        nt = " nt" if c["ntw"] else ""
        a("s_cmp_ge_u32 s2, 240\ns_cbranch_scc1 L_h0_skip")
        a("s_mul_i32 s16, s2, 52429\ns_lshr_b32 s16, s16, 20\ns_mul_i32 s17, s16, 20\ns_sub_u32 s17, s2, s17")
        a("s_sub_u32 s18, s2, 80\ns_mul_i32 s19, s18, 52429\ns_lshr_b32 s19, s19, 21\ns_mul_i32 s20, s19, 40\ns_sub_u32 s20, s18, s20\ns_add_u32 s20, s20, 20")
        a("s_cmp_lt_u32 s2, 80\ns_cselect_b32 s16, s16, s19\ns_cselect_b32 s17, s17, s20")
        self.srd(8, P_WM, 640 * 3840 * 2)
        self.srd(12, P_C, 1280)
        a("v_mul_u32_u24 v3, 80, v2\nv_lshl_add_u32 v3, v1, 3, v3\ns_mul_i32 s18, s16, 320")
        a("buffer_load_dwordx2 v[10:11], v3, s[12:15], s18 offen")
        a(f"v_mul_u32_u24 v4, {40*7680}, v2\nv_lshl_add_u32 v4, v1, 3, v4")
        a(f"s_mul_i32 s18, s16, {160*7680}\ns_lshl_b32 s19, s17, 7\ns_add_u32 s18, s18, s19")
        WB = 40
        for n in range(40):
            a(f"buffer_load_dwordx2 v[{WB+2*n}:{WB+2*n+1}], v4, s[8:11], s18 offen{nt}")
            if n < 39: a("s_add_u32 s18, s18, 7680")
        a("s_barrier")
        self.masks(2, 24, 6)
        a("s_waitcnt vmcnt(40)")
        a("v_lshlrev_b32 v12, 16, v10\nv_and_b32 v13, 0xffff0000, v10\nv_lshlrev_b32 v14, 16, v11\nv_and_b32 v15, 0xffff0000, v11")
        for i in range(4): self.silu(12 + i, 6 + i)
        for i in range(4): a(f"v_cvt_pk_bf16_f32 v{12+i}, v{12+i}, v{12+i}")
        for t in range(20):
            cc, p = divmod(t, 2)
            a(f"s_waitcnt vmcnt({38-2*t})")
            self.tile(16, 28 + 4 * (t % 2), [12+2*p, 12+2*p, 13+2*p, 13+2*p], [24, 25, 24, 25], cc, WB + 4 * t, t == 0)
        self.lds_wait(F_INV, 1, 6)
        a("s_mul_i32 s18, s16, 15360\ns_lshl_b32 s19, s17, 8\ns_add_u32 s18, s18, s19")
        self.ws_base(20, 18, R_M)
        a("v_lshlrev_b32 v3, 4, v0")
        for i in range(4): a(f"v_min_u32 v{16+i}, -2, v{16+i}")
        a("s_mov_b64 exec, 0xffff")
        a("global_store_dwordx4 v3, v[16:19], s[20:21] sc1")
        a("s_mov_b64 exec, -1")
        self.stamp(1)
        self.stamp_flush()
        a("s_mov_b64 exec, -1")
        a("s_branch L_tailw")
        a("L_h0_skip:\ns_barrier")
        if c["stamps"]:
            self.pending = [0]; self.stamp_flush(); a("s_mov_b64 exec, -1")
        a("s_branch L_tailw")

    def ln_stats_finish(self, vm, vv, t):
        a = self.a
        self.rnd2(vm, vv, t)
        a(f"v_add_f32 v{vv}, {EPS}, v{vv}")
        self.rnd1(vv)
        a(f"v_sqrt_f32 v{vv}, v{vv}")
        self.rnd1(vv)
        a(f"v_rcp_f32 v{vv}, v{vv}")

    def h1(self):
        a = self.a; c = self.c
        nt = " nt" if c["ntw"] else ""
        a("L_h1:")
        self.srd(8, P_WQ, 640 * 4096 * 2)
        self.srd(12, P_X, 1280)
        a("v_lshlrev_b32 v3, 2, v0")
        for k in range(5): a(f"buffer_load_dword v{10+k}, v3, s[12:15], 0 offen offset:{256*k}")
        a("v_mul_u32_u24 v4, 40, v2\nv_lshl_add_u32 v4, v1, 2, v4\ns_mul_i32 s18, s6, 160")
        a("buffer_load_dword v15, v4, s[12:15], s18 offen")
        a(f"v_mul_u32_u24 v5, {20*8192}, v2\nv_lshl_add_u32 v5, v1, 4, v5")
        a(f"s_mul_i32 s18, s6, {80*8192}\ns_lshl_b32 s19, s5, 8\ns_add_u32 s18, s18, s19")
        WB = 40
        for n in range(20):
            a(f"buffer_load_dwordx4 v[{WB+4*n}:{WB+4*n+3}], v5, s[8:11], s18 offen{nt}")
            if n < 19: a("s_add_u32 s18, s18, 8192")
        a("s_barrier")
        self.masks(4, 24, 6)
        a("s_waitcnt vmcnt(20)")
        X = 120
        for k in range(5):
            a(f"v_lshlrev_b32 v{X+2*k}, 16, v{10+k}\nv_and_b32 v{X+2*k+1}, 0xffff0000, v{10+k}")
        a(f"v_add_f32 v6, v{X}, v{X+1}")
        for k in range(2, 10): a(f"v_add_f32 v6, v6, v{X+k}")
        self.reduce("v_add_f32", 6)
        a("v_readlane_b32 s22, v6, 63")
        a(f"v_mov_b32 v8, 0x3acccccd\nv_mul_f32 v8, s22, v8")
        for k in range(10): a(f"v_sub_f32 v{X+k}, v{X+k}, v8")
        a(f"v_mul_f32 v6, v{X}, v{X}")
        for k in range(1, 10): a(f"v_fmac_f32 v6, v{X+k}, v{X+k}")
        self.reduce("v_add_f32", 6)
        a("v_readlane_b32 s22, v6, 63")
        a(f"v_mov_b32 v9, 0x3acccccd\nv_mul_f32 v9, s22, v9")
        self.ln_stats_finish(8, 9, 6)
        a("v_lshlrev_b32 v12, 16, v15\nv_and_b32 v13, 0xffff0000, v15")
        a("v_sub_f32 v12, v12, v8\nv_sub_f32 v13, v13, v8")
        self.rnd2(12, 13, 6)
        a("v_mul_f32 v12, v12, v9\nv_mul_f32 v13, v13, v9")
        self.rnd2(12, 13, 6)
        self.cnt_wait(0, 80, 6)
        a("s_mul_i32 s18, s6, 320")
        self.ws_base(20, 18, R_M)
        a("s_add_u32 s22, s20, 15360\ns_addc_u32 s23, s21, 0\ns_add_u32 s24, s22, 15360\ns_addc_u32 s25, s23, 0\ns_add_u32 s26, s24, 15360\ns_addc_u32 s27, s25, 0")
        a("v_lshlrev_b32 v4, 1, v4")
        G = 120
        loads = []
        for s in range(4):
            loads.append(f"global_load_dwordx2 v[{G+4*s}:{G+4*s+1}], v4, s[{20+2*s}:{21+2*s}] sc1")
            loads.append(f"global_load_dwordx2 v[{G+4*s+2}:{G+4*s+3}], v4, s[{20+2*s}:{21+2*s}] offset:2560 sc1")
        self.exec40()
        self.poll(loads, list(range(G, G + 16)), 6)
        a("s_mov_b64 exec, -1")
        self.stamp(2)
        for k in range(4):
            a(f"v_add_f32 v{G+k}, v{G+k}, v{G+4+k}\nv_add_f32 v{G+8+k}, v{G+8+k}, v{G+12+k}\nv_add_f32 v{G+k}, v{G+k}, v{G+8+k}")
        self.rnd2(G, G + 1, 6)
        self.rnd2(G + 2, G + 3, 6)
        a(f"v_add_f32 v{G+2}, 1.0, v{G+2}\nv_add_f32 v{G+3}, 1.0, v{G+3}")
        self.rnd2(G + 2, G + 3, 6)
        a(f"v_mul_f32 v12, v12, v{G+2}\nv_mul_f32 v13, v13, v{G+3}")
        self.rnd2(12, 13, 6)
        a(f"v_add_f32 v12, v12, v{G}\nv_add_f32 v13, v13, v{G+1}")
        a("v_cvt_pk_bf16_f32 v12, v12, v12\nv_cvt_pk_bf16_f32 v13, v13, v13")
        for n in range(20):
            cc, u = divmod(n, 2)
            self.tile(16, 28 + 4 * (n % 2), [12 + u] * 4, [24, 25, 26, 27], cc, WB + 4 * n, n == 0)
        self.lds_wait(F_INV, 1, 6)
        a("s_lshl_b32 s18, s4, 9")
        self.ws_base(20, 18, R_Q)
        a("v_lshlrev_b32 v3, 5, v1\nv_lshl_add_u32 v3, v2, 4, v3")
        for i in range(4): a(f"v_min_u32 v{16+i}, -2, v{16+i}")
        a("s_mov_b32 exec_hi, 0")
        a("global_store_dwordx4 v3, v[16:19], s[20:21] sc1")
        a("s_mov_b64 exec, -1")
        self.stamp(3)
        self.cnt_wait(128, 176, 6)
        a("s_lshl_b32 s18, s5, 12")
        self.ws_base(20, 18, R_Q)
        a("v_lshlrev_b32 v3, 3, v0")
        loads = [f"global_load_dwordx2 v[{G+2*k}:{G+2*k+1}], v3, s[20:21] offset:{512*k} sc1" for k in range(8)]
        self.poll(loads, list(range(G, G + 16)), 6)
        for k in range(1, 8):
            a(f"v_add_f32 v{G}, v{G}, v{G+2*k}\nv_add_f32 v{G+1}, v{G+1}, v{G+2*k+1}")
        a(f"v_cvt_pk_bf16_f32 v6, v{G}, v{G+1}\nv_lshlrev_b32 v3, 2, v0")
        a(f"ds_write_b32 v3, v6 offset:{L_Q}\ns_waitcnt lgkmcnt(0)")
        self.lds_set(F_Q, 6)
        self.stamp(4)
        self.stamp_flush()
        a("s_mov_b64 exec, -1")
        a("s_branch L_tailw")

    def h3(self):
        a = self.a; c = self.c
        a("L_h3:")
        a("v_mov_b32 v4, -1\nv_mov_b32 v5, -1\nv_mov_b32 v6, -1\nv_mov_b32 v7, -1\nv_lshlrev_b32 v3, 4, v0")
        a("v_mov_b32 v8, 0\nv_lshlrev_b32 v9, 2, v0")
        a("s_mov_b64 exec, 0xffff\nds_write_b32 v9, v8")
        a("s_mov_b32 exec_lo, -1")
        a("s_lshl_b32 s18, s4, 9")
        self.ws_base(20, 18, R_Q)
        a("global_store_dwordx4 v3, v[4:7], s[20:21] sc1")
        self.ws_base(20, 18, R_A)
        a("global_store_dwordx4 v3, v[4:7], s[20:21] sc1")
        a("s_lshl_b32 s18, s4, 6")
        self.ws_base(20, 18, R_S)
        a("s_mov_b64 exec, 0xf")
        a("global_store_dwordx4 v3, v[4:7], s[20:21] sc1")
        a("s_cmp_ge_u32 s2, 240\ns_cbranch_scc1 L_h3_nom")
        a("s_mul_i32 s16, s2, 52429\ns_lshr_b32 s16, s16, 20\ns_mul_i32 s17, s16, 20\ns_sub_u32 s17, s2, s17")
        a("s_sub_u32 s18, s2, 80\ns_mul_i32 s19, s18, 52429\ns_lshr_b32 s19, s19, 21\ns_mul_i32 s20, s19, 40\ns_sub_u32 s20, s18, s20\ns_add_u32 s20, s20, 20")
        a("s_cmp_lt_u32 s2, 80\ns_cselect_b32 s16, s16, s19\ns_cselect_b32 s17, s17, s20")
        a("s_mul_i32 s18, s16, 15360\ns_lshl_b32 s19, s17, 8\ns_add_u32 s18, s18, s19")
        self.ws_base(20, 18, R_M)
        a("s_mov_b64 exec, 0xffff")
        a("global_store_dwordx4 v3, v[4:7], s[20:21] sc1")
        a("L_h3_nom:")
        a("s_cmp_lg_u32 s33, 1\ns_cbranch_scc1 L_h3_now")
        a("s_lshl_b32 s18, s7, 9")
        self.ws_base(20, 18, R_B)
        a("s_mov_b32 exec_lo, -1")
        a("global_store_dwordx4 v3, v[4:7], s[20:21] sc1")
        a("L_h3_now:")
        a("s_cmp_lg_u32 s33, 2\ns_cbranch_scc1 L_h3_nog")
        a("s_sub_u32 s18, s7, 40\ns_lshl_b32 s18, s18, 7")
        self.ws_base(20, 18, R_C)
        a("s_mov_b64 exec, 0xff")
        a("global_store_dwordx4 v3, v[4:7], s[20:21] sc1")
        a("L_h3_nog:")
        a("s_mov_b64 exec, -1")
        a("s_waitcnt lgkmcnt(0)\ns_barrier")
        a("s_waitcnt vmcnt(0)")
        a("s_cmp_lt_u32 s2, 80\ns_cselect_b32 s18, 0, 128\nv_mov_b32 v3, s18\nv_mov_b32 v4, 1")
        a("s_mov_b64 exec, 1")
        a(f"global_atomic_add v3, v4, {self.sp(P_DBG)} sc1")
        self.lds_set(F_INV, 6)
        a("s_mov_b64 exec, -1")
        a("s_branch L_tailw")

    def h2(self):
        a = self.a; c = self.c
        nt = " nt" if c["ntw"] else ""
        hw = c["hw"]
        a("L_h2:\ns_barrier")
        a("L_tailw:")
        WB = 40
        a("s_cmp_eq_u32 s33, 2\ns_cbranch_scc1 L_tw_g")
        a("s_cmp_eq_u32 s33, 3\ns_cbranch_scc1 L_tw_d")
        a("s_cmp_eq_u32 s33, 0\ns_cbranch_scc1 L_tw_done")
        a("s_mul_i32 s28, s7, 52429\ns_lshr_b32 s28, s28, 18\ns_mul_i32 s29, s28, 5\ns_sub_u32 s29, s7, s29")
        a("s_lshl_b32 s30, s28, 2\ns_add_u32 s30, s30, s3")
        self.srd(8, P_WO, 4096 * 640 * 2)
        a(f"v_mul_u32_u24 v3, {32*1280}, v2\nv_lshl_add_u32 v3, v1, 4, v3")
        a(f"s_mul_i32 s18, s30, {128*1280}\ns_lshl_b32 s19, s29, 8\ns_add_u32 s18, s18, s19")
        for n in range(32):
            if n and n % 4 == 0: a("s_add_u32 s18, s18, 5120")
            if n >= hw: a(f"s_waitcnt vmcnt({hw-1})")
            a(f"buffer_load_dwordx4 v[{WB+4*n}:{WB+4*n+3}], v3, s[8:11], s18 offen offset:{1280*(n%4)}{nt}")
        a("s_branch L_tw_done")
        a("L_tw_g:")
        a("s_sub_u32 s28, s7, 40")
        a(f"v_mov_b32 v4, s{P_WG}\nv_mov_b32 v5, s{P_WG+1}\nv_mov_b32 v6, s{P_WU}\nv_mov_b32 v7, s{P_WU+1}")
        a("v_cmp_gt_u32 vcc, 8, v1\nv_cndmask_b32 v4, v6, v4, vcc\nv_cndmask_b32 v5, v7, v5, vcc")
        a(f"v_mul_u32_u24 v3, {40*3456}, v2\nv_and_b32 v6, 7, v1\nv_lshl_add_u32 v3, v6, 3, v3")
        a(f"s_mul_i32 s18, s3, {160*3456}\ns_lshl_b32 s19, s28, 6\ns_add_u32 s18, s18, s19\nv_add_u32 v3, s18, v3")
        a("v_add_co_u32 v4, vcc, v4, v3\nv_addc_co_u32 v5, vcc, 0, v5, vcc")
        for n in range(40):
            if n and n % 2 == 0: a("v_add_co_u32 v4, vcc, 6912, v4\nv_addc_co_u32 v5, vcc, 0, v5, vcc")
            if n >= 2 * hw: a(f"s_waitcnt vmcnt({2*hw-1})")
            a(f"global_load_dwordx2 v[{WB+2*n}:{WB+2*n+1}], v[4:5], off offset:{3456*(n%2)}{nt}")
        a("s_branch L_tw_done")
        a("L_tw_d:")
        a("s_sub_u32 s28, s7, 94")
        self.srd(8, P_WD, 1728 * 640 * 2)
        a(f"v_mul_u32_u24 v3, {108*1280}, v2\nv_lshl_add_u32 v3, v1, 2, v3")
        a(f"s_mul_i32 s18, s3, {432*1280}\ns_lshl_b32 s19, s28, 6\ns_add_u32 s18, s18, s19")
        for n in range(108):
            if n and n % 4 == 0: a("s_add_u32 s18, s18, 5120")
            if n >= 4 * hw: a(f"s_waitcnt vmcnt({4*hw-1})")
            a(f"buffer_load_dword v{WB+n}, v3, s[8:11], s18 offen offset:{1280*(n%4)}{nt}")
        a("L_tw_done:")
        a("s_waitcnt vmcnt(0)")
        self.stamp(11 % 8 + 8 if False else 11)
        self.lds_wait(F_Q, 1, 6, sleep=4)
        a("s_cmp_lg_u32 s3, 2\ns_cbranch_scc1 L_tail")
        a("s_lshl_b32 s18, s5, 9")
        self.ws_base(20, 18, R_S)
        a("v_lshlrev_b32 v3, 3, v0")
        self.poll(["global_load_dwordx2 v[8:9], v3, s[20:21] sc1"], [8, 9], 6, sleep=2)
        a("v_mov_b32 v10, v8")
        self.reduce("v_max_f32", 10)
        a("v_readlane_b32 s22, v10, 63")
        a(f"v_subrev_f32 v8, s22, v8\nv_mul_f32 v8, {LOG2E}, v8\nv_exp_f32 v8, v8\nv_mul_f32 v9, v9, v8")
        self.reduce("v_add_f32", 9)
        a("v_readlane_b32 s23, v9, 63")
        a("v_mov_b32 v11, s23\nv_rcp_f32 v9, v11")
        a("v_fma_f32 v11, -v11, v9, 1.0\nv_fma_f32 v9, v11, v9, v9")
        a("v_mov_b32 v8, s22\nv_mov_b32 v6, 0")
        a(f"ds_write_b64 v6, v[8:9] offset:{L_ML}\ns_waitcnt lgkmcnt(0)")
        self.lds_set(F_ML, 6)
        if c["stamps"]:
            keep = list(self.pending); self.pending = []
            self.stamp(5); self.stamp_flush(); a("s_mov_b64 exec, -1")
            self.pending = keep

    def tail_end(self):
        a = self.a
        if self.c["stamps"]:
            L = a.newlabel("Lst")
            a(f"s_cmp_lg_u32 s3, 0\ns_cbranch_scc1 L_end")
            self.pending = [11, 12, 13]
            self.stamp_flush()
        a("s_endpgm")

    def tail(self):
        a = self.a; c = self.c
        WB = 40
        a("L_tail:")
        a("s_cmp_eq_u32 s33, 0\ns_cbranch_scc1 L_end")
        a("s_cmp_eq_u32 s33, 2\ns_cbranch_scc1 L_tail_g")
        a("s_cmp_eq_u32 s33, 3\ns_cbranch_scc1 L_tail_d")
        self.masks(4, 4, 8)
        a("s_lshl_b32 s18, s30, 12")
        self.ws_base(20, 18, R_A)
        a("s_lshl_b32 s18, s7, 9")
        self.ws_base(22, 18, R_B)
        a("v_lshlrev_b32 v3, 3, v0")
        a("v_lshlrev_b32 v12, 5, v1\nv_lshl_add_u32 v12, v2, 4, v12\ns_lshl_b32 s18, s3, 9\nv_add_u32 v12, s18, v12")
        a("v_lshlrev_b32 v13, 4, v0")
        self.lds_wait(F_OCNT, 1, 8, cmp="ge", sleep=2)
        G = 24
        loads = [f"global_load_dwordx2 v[{G+2*k}:{G+2*k+1}], v3, s[20:21] offset:{512*k} sc1" for k in range(8)]
        self.poll(loads, list(range(G, G + 16)), 8)
        self.stamp(12)
        for k in range(1, 8):
            a(f"v_add_f32 v{G}, v{G}, v{G+2*k}\nv_add_f32 v{G+1}, v{G+1}, v{G+2*k+1}")
        a(f"v_cvt_pk_bf16_f32 v10, v{G}, v{G}\nv_cvt_pk_bf16_f32 v11, v{G+1}, v{G+1}")
        for n in range(32):
            cc, u = divmod(n, 2)
            self.tile(16, 24 + 4 * (n % 2), [10 + u] * 4, [4, 5, 6, 7], cc, WB + 4 * n, n == 0)
        a("s_mov_b32 exec_hi, 0")
        a(f"ds_write_b128 v12, v[16:19] offset:{L_RED}\ns_waitcnt lgkmcnt(0)\ns_barrier")
        a("s_cmp_lg_u32 s3, 0\ns_cbranch_scc1 L_end")
        for k in range(4): a(f"ds_read_b128 v[{24+4*k}:{27+4*k}], v13 offset:{L_RED+512*k}")
        a("s_waitcnt lgkmcnt(0)")
        for i in range(4):
            a(f"v_add_f32 v{24+i}, v{24+i}, v{28+i}\nv_add_f32 v{32+i}, v{32+i}, v{36+i}")
        for i in range(4):
            a(f"v_add_f32 v{24+i}, v{24+i}, v{32+i}\nv_min_u32 v{24+i}, -2, v{24+i}")
        a("global_store_dwordx4 v13, v[24:27], s[22:23] sc1")
        self.stamp(13)
        self.tail_end()
        a("L_tail_g:")
        self.masks(2, 4, 8)
        a("v_mul_u32_u24 v3, 160, v2\nv_lshl_add_u32 v3, v1, 4, v3\ns_mul_i32 s18, s3, 640\nv_add_u32 v3, s18, v3")
        self.ws_base(20, None, R_M + 1280 * 4)
        a("s_add_u32 s22, s20, 15360\ns_addc_u32 s23, s21, 0\ns_add_u32 s24, s22, 15360\ns_addc_u32 s25, s23, 0\ns_add_u32 s26, s24, 15360\ns_addc_u32 s27, s25, 0")
        T = 120
        a("v_add_u32 v6, 2560, v3")
        loads = []
        for s in range(4):
            loads.append(f"global_load_dwordx4 v[{T+12*s}:{T+12*s+3}], v3, s[{20+2*s}:{21+2*s}] sc1")
            loads.append(f"global_load_dwordx4 v[{T+12*s+4}:{T+12*s+7}], v3, s[{20+2*s}:{21+2*s}] offset:2560 sc1")
            loads.append(f"global_load_dwordx4 v[{T+12*s+8}:{T+12*s+11}], v6, s[{20+2*s}:{21+2*s}] offset:2560 sc1")
        self.srd(12, P_X, 1280)
        a("v_lshrrev_b32 v7, 1, v3")
        a("buffer_load_dwordx2 v[10:11], v7, s[12:15], 0 offen")
        self.exec40()
        self.poll(loads, list(range(T, T + 48)), 8, sleep=2)
        a("s_mov_b64 exec, -1")
        GA, SB, CB, XX = 24, 28, 32, 36
        for k in range(12):
            a(f"v_add_f32 v{T+k}, v{T+k}, v{T+12+k}\nv_add_f32 v{T+24+k}, v{T+24+k}, v{T+36+k}\nv_add_f32 v{GA+k}, v{T+k}, v{T+24+k}")
        for k in range(0, 12, 2): self.rnd2(GA + k, GA + k + 1, 8)
        for k in range(4): a(f"v_add_f32 v{CB+k}, 1.0, v{CB+k}")
        self.rnd2(CB, CB + 1, 8); self.rnd2(CB + 2, CB + 3, 8)
        a(f"v_lshlrev_b32 v{XX}, 16, v10\nv_and_b32 v{XX+1}, 0xffff0000, v10\nv_lshlrev_b32 v{XX+2}, 16, v11\nv_and_b32 v{XX+3}, 0xffff0000, v11")
        self.ws_base(20, None, R_B)
        for k in range(1, 4):
            a(f"s_add_u32 s{20+2*k}, s{18+2*k}, 5120\ns_addc_u32 s{21+2*k}, s{19+2*k}, 0")
        a("s_lshl_b32 s18, s28, 7")
        self.ws_base(30, 18, R_C)
        a("v_cmp_gt_u32 s[64:65], 10, v1")
        a(f"v_lshlrev_b32 v12, 4, v0\ns_lshl_b32 s18, s3, 8\nv_add_u32 v12, s18, v12")
        a(f"s_lshl_b32 s18, s3, 3\nv_mov_b32 v13, s18\nv_mov_b32 v14, 0\nv_lshlrev_b32 v15, 2, v0")
        self.lds_wait(F_OCNT, 1, 8, cmp="ge", sleep=2)
        Y = 120
        loads = [f"global_load_dwordx4 v[{Y+4*k}:{Y+4*k+3}], v3, s[{20+2*(k//2)}:{21+2*(k//2)}] offset:{2560*(k%2)} sc1" for k in range(8)]
        self.exec40()
        self.poll(loads, list(range(Y, Y + 32)), 8)
        a("s_mov_b64 exec, -1")
        self.stamp(12)
        for k in range(1, 8):
            for i in range(4): a(f"v_add_f32 v{Y+i}, v{Y+i}, v{Y+4*k+i}")
        self.rnd2(Y, Y + 1, 8); self.rnd2(Y + 2, Y + 3, 9)
        for i in range(4): a(f"v_mul_f32 v{Y+i}, v{Y+i}, v{GA+i}")
        self.rnd2(Y, Y + 1, 8); self.rnd2(Y + 2, Y + 3, 9)
        for i in range(4): a(f"v_add_f32 v{Y+i}, v{Y+i}, v{XX+i}")
        self.rnd2(Y, Y + 1, 8); self.rnd2(Y + 2, Y + 3, 9)
        a(f"v_add_f32 v8, v{Y}, v{Y+1}\nv_add_f32 v9, v{Y+2}, v{Y+3}\nv_add_f32 v8, v8, v9\nv_cndmask_b32 v8, 0, v8, s[64:65]")
        self.reduce("v_add_f32", 8)
        a("v_readlane_b32 s18, v8, 63")
        a("v_mov_b32 v10, 0x3bcccccd\nv_mul_f32 v10, s18, v10")
        for i in range(4): a(f"v_sub_f32 v{Y+4+i}, v{Y+i}, v10")
        a(f"v_mul_f32 v11, v{Y+4}, v{Y+4}")
        for i in range(1, 4): a(f"v_fmac_f32 v11, v{Y+4+i}, v{Y+4+i}")
        a("v_cndmask_b32 v11, 0, v11, s[64:65]")
        self.reduce("v_add_f32", 11)
        a("s_mov_b32 exec_lo, 0\ns_mov_b32 exec_hi, 0x80000000")
        a(f"ds_write_b64 v13, v[10:11] offset:{L_ST}")
        a("s_mov_b64 exec, -1")
        a("s_waitcnt lgkmcnt(0)\ns_barrier")
        a(f"ds_read_b128 v[{Y+8}:{Y+11}], v14 offset:{L_ST}\nds_read_b128 v[{Y+12}:{Y+15}], v14 offset:{L_ST+16}\ns_waitcnt lgkmcnt(0)")
        m0, q0, m1, q1, m2, q2, m3, q3 = [Y + 8 + i for i in range(8)]
        a(f"v_add_f32 v8, v{m0}, v{m1}\nv_add_f32 v9, v{m2}, v{m3}\nv_add_f32 v8, v8, v9\nv_mul_f32 v8, 0x3e800000, v8")
        a(f"v_add_f32 v9, v{q0}, v{q1}\nv_add_f32 v10, v{q2}, v{q3}\nv_add_f32 v9, v9, v10")
        for m in (m0, m1, m2, m3): a(f"v_sub_f32 v{m}, v{m}, v8")
        a(f"v_mul_f32 v10, v{m0}, v{m0}\nv_fmac_f32 v10, v{m1}, v{m1}\nv_fmac_f32 v10, v{m2}, v{m2}\nv_fmac_f32 v10, v{m3}, v{m3}")
        a("v_mul_f32 v10, 0x43200000, v10\nv_add_f32 v9, v9, v10\nv_mul_f32 v9, 0x3acccccd, v9")
        self.ln_stats_finish(8, 9, 10)
        for i in range(4): a(f"v_sub_f32 v{Y+i}, v{Y+i}, v8")
        self.rnd2(Y, Y + 1, 10); self.rnd2(Y + 2, Y + 3, 11)
        for i in range(4): a(f"v_mul_f32 v{Y+i}, v{Y+i}, v9")
        self.rnd2(Y, Y + 1, 10); self.rnd2(Y + 2, Y + 3, 11)
        for i in range(4): a(f"v_mul_f32 v{Y+i}, v{Y+i}, v{CB+i}")
        self.rnd2(Y, Y + 1, 10); self.rnd2(Y + 2, Y + 3, 11)
        for i in range(4): a(f"v_add_f32 v{Y+i}, v{Y+i}, v{SB+i}")
        for i in range(4): a(f"v_cvt_pk_bf16_f32 v{Y+i}, v{Y+i}, v{Y+i}")
        for t in range(20):
            cc, p = divmod(t, 2)
            self.tile(16, Y + 8 + 4 * (t % 2), [Y+2*p, Y+2*p, Y+1+2*p, Y+1+2*p], [4, 5, 4, 5], cc, WB + 4 * t, t == 0)
        a("s_mov_b64 exec, 0xffff")
        a(f"ds_write_b128 v12, v[16:19] offset:{L_RED}\ns_waitcnt lgkmcnt(0)\ns_barrier")
        a("s_cmp_lg_u32 s3, 0\ns_cbranch_scc1 L_end")
        a("s_mov_b32 exec_lo, -1")
        for k in range(4):
            a(f"ds_read_b32 v{24+k}, v15 offset:{L_RED+256*k}\nds_read_b32 v{28+k}, v15 offset:{L_RED+256*k+128}")
        a("s_waitcnt lgkmcnt(0)")
        a("v_add_f32 v24, v24, v25\nv_add_f32 v26, v26, v27\nv_add_f32 v28, v28, v29\nv_add_f32 v30, v30, v31\nv_add_f32 v24, v24, v26\nv_add_f32 v28, v28, v30")
        self.rnd2(24, 28, 8)
        self.silu(24, 8)
        self.rnd1(24)
        a("v_mul_f32 v24, v24, v28\nv_cvt_pk_bf16_f32 v24, v24, v24\nv_min_u32 v24, -2, v24")
        a("global_store_dword v15, v24, s[30:31] sc1")
        self.stamp(13)
        self.tail_end()
        a("L_tail_d:")
        self.masks(1, 4, 8)
        a("v_mul_u32_u24 v3, 432, v2\nv_lshl_add_u32 v3, v1, 4, v3\ns_mul_i32 s18, s3, 1728\nv_add_u32 v3, s18, v3")
        self.ws_base(30, None, R_C)
        a(f"v_lshlrev_b32 v12, 3, v0\ns_lshl_b32 s18, s3, 7\nv_add_u32 v13, s18, v12")
        T = 148
        a("v_lshlrev_b32 v7, 2, v0")
        a("s_cmp_lg_u32 s3, 0\ns_cbranch_scc1 L_d_go")
        a("s_lshl_b32 s18, s28, 7")
        self.ws_base(20, 18, R_M + 1280 * 4)
        a("s_add_u32 s22, s20, 15360\ns_addc_u32 s23, s21, 0\ns_add_u32 s24, s22, 15360\ns_addc_u32 s25, s23, 0\ns_add_u32 s26, s24, 15360\ns_addc_u32 s27, s25, 0")
        a("v_add_u32 v6, 7680, v12")
        loads = []
        for s in range(4):
            loads.append(f"global_load_dwordx2 v[{T+4*s}:{T+4*s+1}], v12, s[{20+2*s}:{21+2*s}] sc1")
            loads.append(f"global_load_dwordx2 v[{T+4*s+2}:{T+4*s+3}], v6, s[{20+2*s}:{21+2*s}] sc1")
        self.srd(12, P_X, 1280)
        a("s_lshl_b32 s18, s28, 6")
        a("buffer_load_dword v10, v7, s[12:15], s18 offen")
        a("s_mov_b64 exec, 0xffff")
        self.poll(loads, list(range(T, T + 16)), 8, sleep=2)
        for k in range(4):
            a(f"v_add_f32 v{T+k}, v{T+k}, v{T+4+k}\nv_add_f32 v{T+8+k}, v{T+8+k}, v{T+12+k}\nv_add_f32 v{24+k}, v{T+k}, v{T+8+k}")
        self.rnd2(24, 25, 8); self.rnd2(26, 27, 8)
        a("v_lshlrev_b32 v28, 16, v10\nv_and_b32 v29, 0xffff0000, v10")
        a("s_lshl_b32 s18, s28, 7")
        self.ws_base(20, 18, R_B)
        for k in range(1, 4):
            a(f"s_add_u32 s{20+2*k}, s{18+2*k}, 5120\ns_addc_u32 s{21+2*k}, s{19+2*k}, 0")
        a("s_mov_b64 exec, -1")
        self.lds_wait(F_OCNT, 1, 8, cmp="ge", sleep=2)
        a("s_mov_b64 exec, 0xffff")
        loads = [f"global_load_dwordx2 v[{T+2*k}:{T+2*k+1}], v12, s[{20+2*(k//2)}:{21+2*(k//2)}] offset:{2560*(k%2)} sc1" for k in range(8)]
        self.poll(loads, list(range(T, T + 16)), 8)
        for k in range(1, 8):
            a(f"v_add_f32 v{T}, v{T}, v{T+2*k}\nv_add_f32 v{T+1}, v{T+1}, v{T+2*k+1}")
        self.rnd2(T, T + 1, 8)
        a(f"v_mul_f32 v{T}, v{T}, v24\nv_mul_f32 v{T+1}, v{T+1}, v25")
        self.rnd2(T, T + 1, 8)
        a(f"v_add_f32 v28, v28, v{T}\nv_add_f32 v29, v29, v{T+1}")
        self.rnd2(28, 29, 8)
        a("s_mov_b64 exec, -1")
        a("L_d_go:")
        self.srd(12, P_OUT, 1280)
        self.lds_wait(F_OCNT, 1, 8, cmp="ge", sleep=2)
        X = 148
        a("v_min_u32 v6, 10, v1\nv_sub_u32 v6, v6, v1\nv_lshl_add_u32 v6, v6, 4, v3")
        loads = [f"global_load_dwordx4 v[{X}:{X+3}], v3, s[30:31] sc1", f"global_load_dwordx4 v[{X+4}:{X+7}], v6, s[30:31] offset:256 sc1"]
        self.poll(loads, list(range(X, X + 8)), 8)
        self.stamp(12)
        for t in range(27):
            lam, cc = divmod(t, 16)
            self.tile(16, 156 + 4 * (t % 2), [X + 4 * lam + i for i in range(4)], [4, 4, 4, 4], cc, WB + 4 * t, t == 0)
        a("s_mov_b64 exec, 0xffff")
        a(f"ds_write_b64 v13, v[16:17] offset:{L_RED}\ns_waitcnt lgkmcnt(0)\ns_barrier")
        a("s_cmp_lg_u32 s3, 0\ns_cbranch_scc1 L_end")
        for k in range(4): a(f"ds_read_b64 v[{32+2*k}:{33+2*k}], v12 offset:{L_RED+128*k}")
        a("s_waitcnt lgkmcnt(0)")
        a("v_add_f32 v32, v32, v34\nv_add_f32 v33, v33, v35\nv_add_f32 v36, v36, v38\nv_add_f32 v37, v37, v39\nv_add_f32 v32, v32, v36\nv_add_f32 v33, v33, v37")
        self.rnd2(32, 33, 8)
        a("v_mul_f32 v32, v32, v26\nv_mul_f32 v33, v33, v27")
        self.rnd2(32, 33, 8)
        a("v_add_f32 v32, v32, v28\nv_add_f32 v33, v33, v29\nv_cvt_pk_bf16_f32 v32, v32, v33")
        a("s_lshl_b32 s18, s28, 6")
        a("buffer_store_dword v32, v7, s[12:15], s18 offen")
        self.stamp(13)
        self.tail_end()

    def stream(self):
        a = self.a; c = self.c
        a("L_stream:")
        self.srd(8, P_K, 0x4000000)
        self.srd(12, P_V, 0x4000000)
        a("s_sub_u32 s3, s3, 4")
        a("v_lshlrev_b32 v3, 6, v1\nv_lshl_add_u32 v3, v2, 4, v3")
        if c["ilv"] == 1:
            a("s_lshl_b32 s16, s4, 18\ns_lshl_b32 s17, s3, 12\ns_add_u32 s16, s16, s17"); self.step = 32768
        else:
            a("s_lshl_b32 s16, s4, 18\ns_lshl_b32 s17, s3, 15\ns_add_u32 s16, s16, s17"); self.step = 4096
        if c["we"] != c["wo"]:
            a("s_bitcmp1_b32 s2, 0\ns_cbranch_scc1 L_stream_odd")
            self.stream_body(c["we"], "e")
            a("L_stream_odd:")
            self.pending = []
            self.stream_body(c["wo"], "o")
        else:
            self.stream_body(c["we"], "e")

    def stream_body(self, W, tag):
        a = self.a; c = self.c
        nt = " nt" if c["nt"] else ""
        DB = 40
        def T(j): return f"v[{DB+4*j}:{DB+4*j+3}]"
        issued = [0]
        def issue(kind, j):
            if j % 4 == 0:
                if j == 0: a("s_mov_b32 s17, s16")
                else: a(f"s_add_u32 s17, s17, {self.step}")
            if issued[0] >= W: a(f"s_waitcnt vmcnt({W-1})")
            vo, srd = ("v3", "s[8:11]") if kind == "k" else ("v2", "s[12:15]")
            a(f"buffer_load_dwordx4 {T(j)}, {vo}, {srd}, s17 offen offset:{1024*(j%4)}{nt}")
            issued[0] += 1
        def landed():
            return max(0, issued[0] - W)
        for j in range(32):
            issue("k", j)
            if j == W - 1:
                a("s_barrier")
                a("v_and_b32 v4, 3, v1\nv_lshlrev_b32 v4, 6, v4\nv_lshl_add_u32 v4, v2, 4, v4")
                a("v_lshlrev_b32 v14, 5, v1\nv_lshl_add_u32 v14, v2, 4, v14\ns_lshl_b32 s18, s3, 9\nv_add_u32 v14, s18, v14")
                a("v_lshlrev_b32 v2, 4, v0")
                for k, val in enumerate((0x22222222, 0x44444444, 0x88888888, 0xaaaaaaaa, 0xcccccccc)):
                    a(f"s_mov_b32 s{20+2*k}, {val}\ns_mov_b32 s{21+2*k}, {val}")
                for n in range(4):
                    val = (0x000f000f << (4 * n)) & 0xffffffff
                    a(f"s_mov_b32 s{86+2*n}, {val}\ns_mov_b32 s{87+2*n}, {val}")
                a("s_lshl_b32 s18, s4, 6\ns_lshl_b32 s19, s3, 3\ns_add_u32 s18, s18, s19")
                self.ws_base(30, 18, R_S)
                a("s_lshl_b32 s18, s4, 9")
                self.ws_base(64, 18, R_A)
        self.stamp(6)
        self.lds_wait(F_Q, 1, 6)
        a(f"ds_read_b128 v[8:11], v4 offset:{L_Q}\ns_waitcnt lgkmcnt(0)")
        for n in range(4):
            for i in range(4):
                a(f"v_cndmask_b32 v{24+4*n+i}, 0, v{8+i}, s[{86+2*n}:{87+2*n}]")
        def qk(u):
            acc = 16 + 4 * (u % 2)
            for n in range(4):
                a(f"v_mfma_f32_16x16x32_bf16 v[{acc}:{acc+3}], {T(4*u+n)}, v[{24+4*n}:{27+4*n}], {'0' if n == 0 else f'v[{acc}:{acc+3}]'}")
        def extract(u):
            acc = 16 + 4 * (u % 2); y = 8 + (u % 4)
            a(f"v_cndmask_b32 v{y}, v{acc}, v{acc+1}, s[20:21]\nv_cndmask_b32 v{y}, v{y}, v{acc+2}, s[22:23]\nv_cndmask_b32 v{y}, v{y}, v{acc+3}, s[24:25]")
            if u % 4 == 3:
                S = 4 + u // 4
                a("v_cndmask_b32 v12, v8, v9, s[26:27]\nv_cndmask_b32 v13, v9, v8, s[26:27]")
                a("v_cndmask_b32 v8, v10, v11, s[26:27]\nv_cndmask_b32 v9, v11, v10, s[26:27]")
                a("v_add_f32_dpp v12, v13, v12 quad_perm:[1,0,3,2] row_mask:0xf bank_mask:0xf")
                a("v_add_f32_dpp v8, v9, v8 quad_perm:[1,0,3,2] row_mask:0xf bank_mask:0xf")
                a("v_cndmask_b32 v10, v12, v8, s[28:29]\nv_cndmask_b32 v11, v8, v12, s[28:29]")
                a(f"v_add_f32_dpp v{S}, v11, v10 quad_perm:[2,3,0,1] row_mask:0xf bank_mask:0xf")
        def stats1():
            self.rnd2(4, 5, 8)
            a(f"v_mul_f32 v4, {SCALE}, v4\nv_mul_f32 v5, {SCALE}, v5")
            self.rnd2(4, 5, 8)
            a("v_max_f32 v8, v4, v5")
            self.reduce("v_max_f32", 8)
            a("v_readlane_b32 s18, v8, 63")
        def stats2():
            a(f"v_subrev_f32 v10, s18, v4\nv_subrev_f32 v11, s18, v5\nv_mul_f32 v10, {LOG2E}, v10\nv_mul_f32 v11, {LOG2E}, v11")
            a("v_exp_f32 v10, v10\nv_exp_f32 v11, v11\nv_add_f32 v9, v10, v11")
            self.reduce("v_add_f32", 9)
            a("v_min_u32 v8, -2, v8\nv_min_u32 v9, -2, v9\nv_mov_b32 v10, 0")
            a("s_mov_b32 exec_lo, 0\ns_mov_b32 exec_hi, 0x80000000")
            a("global_store_dwordx2 v10, v[8:9], s[30:31] sc1")
            a("s_mov_b64 exec, -1")
            self.stamp(7)
            self.masks(4, 24, 10)
        def mlwait():
            self.stamp(8)
            self.lds_wait(F_ML, 1, 8)
            self.stamp(9)
            a(f"ds_read_b64 v[10:11], v8 offset:{L_ML}\ns_waitcnt lgkmcnt(0)")
            a(f"v_sub_f32 v4, v4, v10\nv_sub_f32 v5, v5, v10\nv_mul_f32 v4, {LOG2E}, v4\nv_mul_f32 v5, {LOG2E}, v5")
            a("v_exp_f32 v4, v4\nv_exp_f32 v5, v5\nv_mul_f32 v4, v4, v11\nv_mul_f32 v5, v5, v11")
            a("v_cvt_pk_bf16_f32 v4, v4, v4\nv_cvt_pk_bf16_f32 v5, v5, v5")
        def pv(j):
            cc = 4 * (j % 4) + (j // 4) % 4
            self.tile(16, 28 + 4 * (j % 2), [4 + j // 16] * 4, [24, 25, 26, 27], cc, DB + 4 * j, j == 0)
        qdone = 0; xdone = 0; st = 0; pvdone = 0; ml = False
        for j in range(32):
            k = 0
            while qdone < 8 and (k < c["qkrate"] or 4 * qdone <= j) and 4 * qdone + 4 <= landed():
                if qdone >= 2 and xdone < qdone - 1:
                    extract(xdone); xdone += 1
                qk(qdone); qdone += 1; k += 1
                if xdone < qdone - 1:
                    extract(xdone); xdone += 1
            assert 4 * qdone > j, "V tile would overwrite unconsumed K"
            if k == 0 and qdone == 8:
                if xdone < 8:
                    while xdone < 8: extract(xdone); xdone += 1
                    stats1(); st = 1
                elif st == 1:
                    stats2(); st = 2
                elif st == 2 and j >= c["mlslot"] and not ml:
                    mlwait(); ml = True
                elif ml:
                    k2 = 0
                    while k2 < c["pvrate"] and 32 + pvdone + 1 <= landed():
                        pv(pvdone); pvdone += 1; k2 += 1
            issue("v", j)
        assert ml
        while pvdone < 32:
            younger = 31 - pvdone
            if 32 + pvdone + 1 > landed():
                a(f"s_waitcnt vmcnt({younger})")
            pv(pvdone); pvdone += 1
        a("s_mov_b32 exec_hi, 0")
        a(f"ds_write_b128 v14, v[16:19] offset:{L_O}")
        a("v_mov_b32 v8, 0\nv_mov_b32 v9, 1\ns_mov_b64 exec, 1")
        a("s_waitcnt lgkmcnt(0)")
        a(f"ds_add_rtn_u32 v10, v8, v9 offset:{F_OCNT}\ns_waitcnt lgkmcnt(0)\nv_readfirstlane_b32 s18, v10")
        Lx = a.newlabel("Lsx")
        a(f"s_cmp_lg_u32 s18, 7\ns_cbranch_scc1 {Lx}")
        a("s_mov_b32 exec_lo, -1")
        for k in range(8): a(f"ds_read_b128 v[{40+4*k}:{43+4*k}], v2 offset:{L_O+512*k}")
        a("s_waitcnt lgkmcnt(0)")
        for k in range(0, 8, 2):
            for i in range(4): a(f"v_add_f32 v{40+4*k+i}, v{40+4*k+i}, v{44+4*k+i}")
        for i in range(4): a(f"v_add_f32 v{40+i}, v{40+i}, v{48+i}\nv_add_f32 v{56+i}, v{56+i}, v{64+i}")
        for i in range(4): a(f"v_add_f32 v{40+i}, v{40+i}, v{56+i}\nv_min_u32 v{40+i}, -2, v{40+i}")
        a("global_store_dwordx4 v2, v[40:43], s[64:65] sc1")
        if c["stamps"]:
            keep = list(self.pending); self.pending = []
            self.stamp(10); self.stamp_flush()
            self.pending = keep
        a(f"{Lx}:")
        if c["stamps"]:
            keep = list(self.pending); self.pending = []
            a("s_memrealtime s[74:75]")
            a("s_waitcnt lgkmcnt(0)")
            self.pending = [(18, "s3")]
            self.stamp_flush()
            a("s_cmp_lg_u32 s3, 0\ns_cbranch_scc1 L_end")
            self.pending = keep
            self.stamp_flush()
        a("s_endpgm")

if __name__ == "__main__":
    import argparse, json
    ap = argparse.ArgumentParser()
    ap.add_argument("out")
    ap.add_argument("--cfg", default="{}")
    args = ap.parse_args()
    open(args.out, "w").write(Gen(json.loads(args.cfg)).build())
```
